```python
import torch

def _softmax(x, axis=-1):
    return torch.softmax(x, dim=axis)
def _gelu(x):
    return torch.nn.functional.gelu(x, approximate="tanh")
def _silu(x):
    return torch.nn.functional.silu(x)
def _sigmoid(x):
    return torch.sigmoid(x)
def _layernorm(x, axis=-1, eps=1e-5):
    m = x.mean(dim=axis, keepdim=True)
    v = x.var(dim=axis, keepdim=True, unbiased=False)
    return (x - m) / torch.sqrt(v + eps)
def _scatter_add(tgt, idx, src, axis=0):
    return tgt.clone().index_add_(axis, idx, src)
def _segment_sum(src, seg, n):
    out = torch.zeros((n,) + src.shape[1:], dtype=src.dtype)
    return out.index_add_(0, seg, src)
def _pad(x, pw):
    flat = tuple(v for pair in reversed(pw) for v in pair)
    return torch.nn.functional.pad(x, flat)

kernel_name = 'standalone__linear_kernel_performer__prompt'

def setup_inputs():

    _w = (lambda a: (lambda t: t.to(torch.bfloat16) if t.is_floating_point() else t)(torch.as_tensor(a)))
    B, H, S, D = 1, 32, 2048, 192
    M = D
    return {
        "q": _w((lambda *s: torch.randn(*s, dtype=torch.bfloat16) * 0.05)(B, H, S, D)),
        "k": _w((lambda *s: torch.randn(*s, dtype=torch.bfloat16) * 1.6)(B, H, S, D)),
        "v": _w((lambda *s: torch.randn(*s, dtype=torch.bfloat16) * 1.6)(B, H, S, D)),
        "proj": _w((lambda *s: torch.randn(*s, dtype=torch.bfloat16) * 1.6)(M, D)),
    }

def reference(q, k, v, proj):
    B, H, S, D = q.shape
    M = proj.shape[0]
    scale = D ** -0.25
    qs = q * scale
    ks = k * scale
    qw = torch.einsum("bhsd,md->bhsm", qs, proj)
    kw = torch.einsum("bhsd,md->bhsm", ks, proj)
    qn = torch.einsum("bhsd,bhsd->bhs", qs, qs)[..., None] * 0.5
    kn = torch.einsum("bhsd,bhsd->bhs", ks, ks)[..., None] * 0.5
    inv_sqrt_m = M ** -0.5
    phi_q = torch.exp(qw - qn) * inv_sqrt_m
    phi_k = torch.exp(kw - kn) * inv_sqrt_m
    kv = torch.einsum("bhsm,bhsd->bhmd", phi_k, v)
    ksum = torch.einsum("bhsm->bhm", phi_k)
    num = torch.einsum("bhsm,bhmd->bhsd", phi_q, kv)
    den = torch.einsum("bhsm,bhm->bhs", phi_q, ksum)[..., None] + 1e-6
    return num / den
```

```python
import re

REG_RE = re.compile(r'^(v|a|s)(\d+)$|^(v|a|s)\[(\d+):(\d+)\]$')

def parse_reg(tok):
    tok = tok.strip()
    neg = False
    if tok.startswith('-'):
        tok = tok[1:]
    if tok.startswith('abs(') and tok.endswith(')'):
        tok = tok[4:-1]
    if tok.startswith('|') and tok.endswith('|'):
        tok = tok[1:-1]
    if tok == 'vcc':
        return [('s', 'vcc')]
    if tok == 'exec':
        return [('s', 'exec')]
    if tok == 'm0':
        return [('s', 'm0')]
    m = REG_RE.match(tok)
    if not m:
        return []
    if m.group(1):
        return [(m.group(1), int(m.group(2)))]
    f, lo, hi = m.group(3), int(m.group(4)), int(m.group(5))
    return [(f, i) for i in range(lo, hi + 1)]

TRANS = ('v_exp_f32', 'v_log_f32', 'v_rcp_f32', 'v_rsq_f32', 'v_sqrt_f32', 'v_sin_f32', 'v_cos_f32')

class Ins:
    __slots__ = ('text', 'op', 'kind', 'reads', 'writes', 'cregs', 'passes', 'is_label', 'target', 'nop', 'wide', 'dpp')
    def __init__(self, text):
        self.text = text
        self.is_label = False
        self.target = None
        self.nop = 0
        self.reads = []
        self.writes = []
        self.cregs = []
        self.passes = 0
        self.wide = False
        self.dpp = False
        t = text.split(';')[0].strip()
        if not t:
            self.kind = 'comment'; self.op = ''; return
        if t.endswith(':'):
            self.is_label = True; self.kind = 'label'; self.op = t[:-1]; return
        if t.startswith('.'):
            self.kind = 'directive'; self.op = t; return
        parts = t.split(None, 1)
        op = parts[0]; self.op = op
        rest = parts[1] if len(parts) > 1 else ''
        ops = [o.strip() for o in rest.split(',')] if rest else []
        mods = ''
        if ops:
            last = ops[-1].split(None, 1)
            ops[-1] = last[0]
            mods = last[1] if len(last) > 1 else ''
        R = [parse_reg(o) for o in ops]
        allmods = mods
        if op == 's_nop':
            self.kind = 'nop'; self.nop = int(ops[0], 0); return
        if op.startswith('s_cbranch') or op == 's_branch':
            self.kind = 'branch'; self.target = ops[0]; return
        if op.startswith('v_mfma'):
            self.kind = 'mfma'
            self.passes = 4 if '16x16x32' in op else 8
            self.writes = R[0]; self.reads = R[1] + R[2]; self.cregs = R[3]
            return
        if op.startswith('v_'):
            self.kind = 'valu'
            if any(op.startswith(x) for x in TRANS):
                self.kind = 'trans'
            if 'dpp' in op or 'row_' in allmods or 'quad_perm' in allmods:
                self.dpp = True
            if op.startswith('v_permlane') and 'swap' in op:
                self.kind = 'permlane'
                self.writes = R[0] + R[1]; self.reads = R[0] + R[1]; return
            if op.startswith('v_cmp'):
                self.writes = R[0]; self.reads = sum(R[1:], []); return
            if op.startswith('v_readfirstlane') or op.startswith('v_readlane'):
                self.kind = 'readlane'
                self.writes = R[0]; self.reads = sum(R[1:], []); return
            if op.startswith('v_add_co') or op.startswith('v_sub_co') or op.startswith('v_addc_co'):
                self.writes = R[0] + R[1]; self.reads = sum(R[2:], []); return
            self.writes = R[0]; self.reads = sum(R[1:], [])
            if op.startswith('v_fmac') or op.startswith('v_dot2c') or op.startswith('v_pk_fmac') or op.startswith('v_mac'):
                self.reads = self.reads + R[0]
            if op.startswith('v_cndmask') and len(ops) == 3:
                self.reads = self.reads + [('s', 'vcc')]
            return
        if op.startswith('ds_'):
            if op.startswith('ds_read') or op.startswith('ds_bpermute') or op.startswith('ds_permute') or op.startswith('ds_swizzle'):
                self.kind = 'ds_read'; self.writes = R[0]; self.reads = sum(R[1:], [])
            else:
                self.kind = 'ds_write'; self.reads = sum(R, [])
            return
        if op.startswith('buffer_') or op.startswith('global_'):
            islds = (' lds' in (' ' + allmods)) or ('_lds_' in op)
            if op in ('buffer_wbl2', 'buffer_inv'):
                self.kind = 'vmem'; return
            if islds:
                self.kind = 'dma'; self.reads = sum(R, []) + [('s', 'm0')]; return
            if '_load' in op:
                self.kind = 'vmem_load'; self.writes = R[0]; self.reads = sum(R[1:], []); return
            if '_store' in op:
                self.kind = 'vmem_store'; self.reads = sum(R, [])
                if 'x4' in op or 'x3' in op:
                    self.wide = True
                    self.cregs = R[0] if op.startswith('buffer_') else R[1]
                return
            if '_atomic' in op:
                self.kind = 'vmem_store'; self.reads = sum(R, [])
                if 'sc0' in allmods and op.startswith('global_') and len(ops) == 4:
                    self.writes = R[0]
                return
            raise ValueError(text)
        if op.startswith('s_'):
            self.kind = 'salu'
            if op.startswith('s_waitcnt') or op in ('s_barrier', 's_endpgm', 's_sleep', 's_setprio'):
                self.kind = 'sctl'; return
            if op.startswith('s_cmp'):
                self.reads = sum(R, []); return
            if op.startswith('s_load') or op.startswith('s_memtime') or op.startswith('s_memrealtime'):
                self.kind = 'smem'; self.writes = R[0]; self.reads = sum(R[1:], []); return
            self.writes = R[0] if R else []
            self.reads = sum(R[1:], [])
            return
        raise ValueError('unknown instruction: ' + text)

def isv(r): return r[0] in ('v', 'a')

class HazardState:
    def __init__(self):
        self.pos = 0
        self.valu_w = {}
        self.trans_w = {}
        self.mfma_w = {}
        self.mfma_c = {}
        self.valu_sw = {}
        self.m0_w = -100
        self.store_d = {}
        self.dot_w = {}
    def need(self, ins):
        n = 0
        def req(p, ws):
            nonlocal n
            d = self.pos - p - 1
            if d < ws:
                n = max(n, ws - d)
        k = ins.kind
        valu_like = k in ('valu', 'trans', 'permlane', 'readlane')
        if k == 'mfma':
            for r in ins.reads + ins.cregs:
                if r in self.valu_w: req(self.valu_w[r], 2)
            for r in ins.reads:
                if r in self.mfma_w:
                    p, ps, _ = self.mfma_w[r]; req(p, {4: 8, 8: 12}[ps])
            for r in ins.cregs:
                if r in self.mfma_w:
                    p, ps, dt = self.mfma_w[r]
                    if tuple(ins.cregs) == dt and ps == ins.passes:
                        pass
                    else:
                        req(p, {4: 6, 8: 10}[ps])
            for r in ins.writes:
                if r in self.mfma_w and r not in ins.cregs:
                    p, ps, dt = self.mfma_w[r]; req(p, {4: 6, 8: 10}[ps])
        if valu_like or k in ('vmem_load', 'vmem_store', 'ds_read', 'ds_write', 'dma'):
            for r in ins.reads + ins.writes:
                if r in self.mfma_w:
                    p, ps, _ = self.mfma_w[r]; req(p, {4: 8, 8: 12}[ps])
        if valu_like:
            for r in ins.writes:
                if r in self.mfma_c:
                    p, ps = self.mfma_c[r]; req(p, {4: 3, 8: 7}[ps])
                if r in self.store_d: req(self.store_d[r], 2)
            if k != 'trans':
                for r in ins.reads:
                    if r in self.trans_w: req(self.trans_w[r], 1)
            for r in ins.reads:
                if r[0] == 's' and r in self.valu_sw:
                    req(self.valu_sw[r], 2)
        if k in ('vmem_load', 'ds_read'):
            for r in ins.writes:
                if r in self.store_d: req(self.store_d[r], 1)
        if valu_like or k in ('mfma', 'vmem_store', 'ds_write'):
            for idx, r in enumerate(ins.reads + ins.writes + ins.cregs):
                if r in self.dot_w:
                    p, op = self.dot_w[r]
                    if op == ins.op and ins.op.startswith('v_dot'):
                        srcab = ins.reads[:2]
                        if r in srcab: req(p, 3)
                    else:
                        req(p, 3)
        if k == 'permlane' or ins.dpp:
            for r in ins.reads:
                if r in self.valu_w: req(self.valu_w[r], 2)
        if k == 'readlane':
            for r in ins.reads:
                if r in self.valu_w: req(self.valu_w[r], 1)
        if k in ('vmem_load', 'vmem_store', 'dma'):
            for r in ins.reads:
                if r[0] == 's' and r in self.valu_sw: req(self.valu_sw[r], 5)
        if k == 'salu' or k == 'smem':
            for r in ins.reads:
                if r in self.valu_sw: req(self.valu_sw[r], 4)
        if k == 'dma':
            req(self.m0_w, 1)
        return n
    def commit(self, ins):
        k = ins.kind
        if k in ('comment', 'label', 'directive'):
            return
        if k == 'nop':
            self.pos += ins.nop + 1; return
        p = self.pos
        if k in ('valu', 'trans', 'permlane', 'readlane'):
            for r in ins.writes:
                if isv(r):
                    self.valu_w[r] = p
                    self.mfma_w.pop(r, None)
                    if k == 'trans': self.trans_w[r] = p
                    else: self.trans_w.pop(r, None)
                    if ins.op.startswith('v_dot'): self.dot_w[r] = (p, ins.op)
                    else: self.dot_w.pop(r, None)
                else:
                    self.valu_sw[r] = p
        elif k == 'mfma':
            dt = tuple(ins.writes)
            for r in ins.writes:
                self.mfma_w[r] = (p, ins.passes, dt)
                self.valu_w.pop(r, None); self.trans_w.pop(r, None)
            for r in ins.cregs:
                self.mfma_c[r] = (p, ins.passes)
        elif k in ('vmem_load', 'ds_read'):
            for r in ins.writes:
                self.valu_w.pop(r, None); self.trans_w.pop(r, None); self.mfma_w.pop(r, None)
        elif k == 'vmem_store' and ins.wide:
            for r in ins.cregs: self.store_d[r] = p
        elif k in ('salu', 'smem'):
            for r in ins.writes:
                if r == ('s', 'm0'): self.m0_w = p
                self.valu_sw.pop(r, None)
        self.pos += 1

class Prog:
    def __init__(self):
        self.lines = []
    def __call__(self, text):
        for l in text.strip('\n').split('\n'):
            self.lines.append(l.strip())
    def c(self, text):
        self.lines.append('; ' + text)
    def finalize(self):
        ins = [Ins(l) for l in self.lines]
        out = self._pad(ins)
        changed = True
        it = 0
        while changed and it < 10:
            changed = False; it += 1
            labels = {x.op: i for i, x in enumerate(out) if x.is_label}
            for b, x in enumerate(out):
                if x.kind == 'branch' and x.target in labels and labels[x.target] < b:
                    h = labels[x.target]
                    st = HazardState()
                    for y in out[h:b + 1]: st.commit(y)
                    worst = 0
                    for y in out[h:b + 1]:
                        if y.kind not in ('comment', 'label', 'directive', 'nop', 'branch', 'sctl'):
                            worst = max(worst, st.need(y))
                        st.commit(y)
                        if st.pos > 2 * 10000: break
                    if worst > 0:
                        nops = self._nops(worst)
                        out[b:b] = nops
                        changed = True
                        break
        labels = {x.op: i for i, x in enumerate(out) if x.is_label}
        for b, x in enumerate(out):
            if x.kind == 'branch' and x.target in labels and labels[x.target] > b:
                h = labels[x.target]
                st = HazardState()
                for y in out[:b + 1]: st.commit(y)
                cnt = 0
                for y in out[h:]:
                    if y.kind not in ('comment', 'label', 'directive', 'nop', 'branch', 'sctl'):
                        nd = st.need(y)
                        if nd > 0:
                            raise RuntimeError(f'hazard on forward branch path to {x.target}: {y.text} needs {nd}')
                    st.commit(y); cnt += 1
                    if cnt > 24: break
        txt = []
        for x in out:
            if x.is_label or x.kind == 'directive': txt.append(x.text)
            else: txt.append('    ' + x.text)
        return '\n'.join(txt) + '\n'
    def _nops(self, n):
        r = []
        while n > 0:
            m = min(n, 16); r.append(Ins(f's_nop {m - 1}')); n -= m
        return r
    def _pad(self, ins):
        st = HazardState(); out = []
        for x in ins:
            if x.kind not in ('comment', 'label', 'directive', 'nop', 'branch', 'sctl'):
                n = st.need(x)
                if n > 0:
                    for y in self._nops(n):
                        out.append(y); st.commit(y)
            out.append(x); st.commit(x)
        return out

def vr(base, n=1):
    return f'v{base}' if n == 1 else f'v[{base}:{base + n - 1}]'
def ar(base, n=1):
    return f'a{base}' if n == 1 else f'a[{base}:{base + n - 1}]'
def sr(base, n=1):
    return f's{base}' if n == 1 else f's[{base}:{base + n - 1}]'
```

```python
import struct, math, sys
from asmlib import *

def f32(x): return '0x%08x' % struct.unpack('<I', struct.pack('<f', x))[0]

D = 192
SCALE = D ** -0.25
LOG2E = 1.4426950408889634
C1 = SCALE * LOG2E
C2 = 0.5 * SCALE * SCALE * LOG2E
C3 = math.log2(D ** -0.5)
PART_BYTES = 78 * 1024
KVF_OFF = 32 << 20

HEADER = open('standalone__linear_kernel_performer__prompt.s.ref').read().split('; Override')[0]

def srd(p, s, ptr_lo, nbytes):
    p(f's_mov_b32 s{s+2}, {nbytes}')
    p(f's_mov_b32 s{s+3}, 0x00020000')

def wg_decode(p):
    p('s_and_b32 s20, s2, 7')
    p('s_lshr_b32 s21, s2, 3')
    p('s_and_b32 s22, s21, 3')
    p('s_lshl_b32 s20, s20, 2')
    p('s_add_u32 s20, s20, s22')
    p('s_lshr_b32 s21, s21, 2')
    p('s_lshl_b32 s22, s20, 3')
    p('s_add_u32 s22, s22, s21')

def norm_reduce(p, frag_base, acc, tmp):
    for ks in range(6):
        for j in range(4):
            x = frag_base + ks * 4 + j
            c = '0' if ks == 0 else f'v{acc+j}'
            p(f'v_dot2_f32_bf16 v{acc+j}, v{x}, v{x}, {c}')
    p(f'v_add_f32 v{acc}, v{acc}, v{acc+1}')
    p(f'v_add_f32 v{acc+2}, v{acc+2}, v{acc+3}')
    p(f'v_add_f32 v{acc}, v{acc}, v{acc+2}')
    p(f'v_mov_b32 v{tmp}, v{acc}')
    p(f'v_permlane16_swap_b32 v{tmp}, v{acc}')
    p(f'v_add_f32 v{acc}, v{acc}, v{tmp}')
    p(f'v_mov_b32 v{tmp}, v{acc}')
    p(f'v_permlane32_swap_b32 v{tmp}, v{acc}')
    p(f'v_add_f32 v{acc}, v{acc}, v{tmp}')
    p(f'v_mul_f32 v{acc}, {f32(C2)}, v{acc}')
    p(f'v_add_f32 v{acc}, {f32(-C3)}, v{acc}')

def gen_k1():
    p = Prog()
    V_LDS = 0; KRING = 98304; KN = 147456
    KST = 16; AW = 112; D1 = 128; KNR = 152; PHI = 160; BW = 172; ONES = 188; TMP = 192
    ACC = 0; PROJ = 156
    p('s_cmp_ge_u32 s2, 256')
    p('s_cbranch_scc1 K1_END')
    p('s_load_dwordx2 s[4:5], s[0:1], 8')
    p('s_load_dwordx2 s[8:9], s[0:1], 16')
    p('s_load_dwordx2 s[12:13], s[0:1], 24')
    p('s_load_dwordx2 s[16:17], s[0:1], 48')
    wg_decode(p)
    p('s_mul_i32 s23, s22, 98304')
    p(f's_mul_i32 s25, s22, {PART_BYTES}')
    p('v_lshrrev_b32 v12, 6, v0')
    p('v_and_b32 v1, 63, v0')
    p('v_readfirstlane_b32 s24, v12')
    p('v_and_b32 v13, 15, v1')
    p('v_lshrrev_b32 v14, 4, v1')
    p('v_mul_u32_u24 v2, 384, v13')
    p('v_lshl_add_u32 v2, v14, 4, v2')
    p('v_lshrrev_b32 v15, 3, v1')
    p('v_mul_u32_u24 v3, 384, v15')
    p('v_bfe_u32 v15, v1, 1, 2')
    p('v_xor_b32 v15, v15, v14')
    p('v_lshl_add_u32 v3, v15, 5, v3')
    p('v_and_b32 v15, 1, v1')
    p('v_lshl_add_u32 v3, v15, 4, v3')
    p('v_lshlrev_b32 v11, 4, v1')
    p(f'v_add_u32 v4, {KRING}, v11')
    p('v_lshrrev_b32 v12, 1, v14')
    p('v_mul_u32_u24 v5, 3072, v12')
    p('v_bfe_u32 v12, v1, 2, 3')
    p('v_lshl_add_u32 v5, v12, 7, v5')
    p('v_and_b32 v15, 3, v1')
    p('v_lshl_add_u32 v5, v15, 3, v5')
    p('v_lshrrev_b32 v12, 1, v12')
    for j in (3, 2, 1, 0):
        p(f'v_xor_b32 v15, {j}, v12')
        p(f'v_lshl_add_u32 v{5+j}, v15, 5, v5')
    p('v_lshlrev_b32 v9, 4, v14')
    p(f'v_add_u32 v9, {KN}, v9')
    p('v_lshlrev_b32 v10, 2, v13')
    p(f'v_add_u32 v10, {KN}, v10')
    for j in range(4):
        p(f'v_mov_b32 v{ONES+j}, 0x3f803f80')
    p('s_and_b32 s26, s24, 1')
    p('s_mul_i32 s27, s24, 3')
    p('s_add_u32 s30, s27, s26')
    p('s_add_u32 s31, s30, 1')
    p('s_lshl_b32 s28, s26, 1')
    p('s_add_u32 s32, s27, 2')
    p('s_sub_u32 s32, s32, s28')
    p('s_mul_i32 s33, s30, 6144')
    p('s_mul_i32 s34, s31, 6144')
    p('s_mul_i32 s35, s32, 6144')
    p('s_mul_i32 s36, s24, 6144')
    p(f's_mov_b32 s40, {f32(C1)}')
    p('s_waitcnt lgkmcnt(0)')
    p('s_add_u32 s4, s4, s23'); p('s_addc_u32 s5, s5, 0'); srd(p, 4, None, 98304)
    p('s_add_u32 s8, s8, s23'); p('s_addc_u32 s9, s9, 0'); srd(p, 8, None, 98304)
    srd(p, 12, None, 73728)
    p('s_add_u32 s16, s16, s25'); p('s_addc_u32 s17, s17, 0'); srd(p, 16, None, PART_BYTES)
    for L in range(3):
        for ks in range(6):
            p(f'buffer_load_dwordx4 {ar(PROJ + (L*6+ks)*4, 4)}, v2, s[12:15], s{33+L} offen offset:{ks*64}')
    def issue_k(T):
        p(f's_add_u32 s41, s36, {T*24576}')
        for ks in range(6):
            p(f'buffer_load_dwordx4 {vr(KST + T*24 + ks*4, 4)}, v2, s[4:7], s41 offen offset:{ks*64}')
    def issue_v(T):
        for e in range(6):
            uo = T*24576 + (e//3)*3072
            cb = e % 3
            p(f's_add_u32 s41, s36, {uo + cb*128}')
            p(f's_add_u32 m0, s36, {V_LDS + uo + cb*1024}')
            p(f'buffer_load_dwordx4 v3, s[8:11], s41 offen lds')
    for T in range(3):
        issue_k(T); issue_v(T)
    def stage(T):
        base = KST + T*24
        norm_reduce(p, base, TMP, TMP+4)
        p(f's_lshl_b32 s41, s24, 6')
        p(f'v_add_u32 v{TMP+5}, s41, v10')
        p(f'ds_write_b32 v{TMP+5}, v{TMP} offset:{T*256}')
        p(f's_mul_i32 s41, s24, 6144')
        p(f'v_add_u32 v{TMP+5}, s41, v4')
        for ks in range(6):
            p(f'ds_write_b128 v{TMP+5}, {vr(base+ks*4, 4)} offset:{(T&1)*24576 + ks*1024}')
    def compute(it):
        T = it >> 1; slot = T & 1; s0 = 2*(it & 1)
        p.c(f'---- iteration {it}')
        for st in range(2):
            p(f'ds_read_b128 {vr(KNR+st*4, 4)}, v9 offset:{(2*it+st)*64}')
        def rdA(ks):
            for st in range(2):
                p(f'ds_read_b128 {vr(AW + (ks&1)*8 + st*4, 4)}, v4 offset:{slot*24576 + ((s0+st)*6+ks)*1024}')
        rdA(0)
        for ks in range(6):
            if ks < 5:
                rdA(ks+1)
                p('s_waitcnt lgkmcnt(2)')
            else:
                p('s_waitcnt lgkmcnt(0)')
            for st in range(2):
                for L in range(3):
                    d = vr(D1 + (st*3+L)*4, 4)
                    c = '0' if ks == 0 else d
                    p(f'v_mfma_f32_16x16x32_bf16 {d}, {vr(AW + (ks&1)*8 + st*4, 4)}, {ar(PROJ + (L*6+ks)*4, 4)}, {c}')
        def rdB(dt):
            j = dt & 3; cb = dt >> 2
            for hh in range(2):
                p(f'ds_read_b64_tr_b16 {vr(BW + (dt&3)*4 + hh*2, 2)}, v{5+j} offset:{hh*6144 + cb*1024}')
        rdB(0); rdB(1); rdB(2)
        for L in range(3):
            for st in range(2):
                for r in range(4):
                    x = D1 + (st*3+L)*4 + r
                    p(f'v_fma_f32 v{x}, v{x}, s40, -v{KNR+st*4+r}')
                for r in range(4):
                    x = D1 + (st*3+L)*4 + r
                    p(f'v_exp_f32 v{x}, v{x}')
                x = D1 + (st*3+L)*4
                p(f'v_cvt_pk_bf16_f32 v{PHI+L*4+st*2}, v{x}, v{x+1}')
                p(f'v_cvt_pk_bf16_f32 v{PHI+L*4+st*2+1}, v{x+2}, v{x+3}')
        for dt in range(13):
            if dt + 3 < 12:
                rdB(dt+3)
            if dt < 12:
                rem = min(12, dt+4) - (dt+1)
                p(f's_waitcnt lgkmcnt({2*rem})')
                b = vr(BW + (dt&3)*4, 4)
            else:
                b = vr(ONES, 4)
            for L in range(3):
                a = ar(ACC + (L*13+dt)*4, 4)
                c = '0' if it == 0 else a
                p(f'v_mfma_f32_16x16x32_bf16 {a}, {vr(PHI+L*4, 4)}, {b}, {c}')
        for j in range(4):
            p(f'v_add_u32 v{5+j}, 12288, v{5+j}')
    p('s_waitcnt vmcnt(30)')
    issue_k(3); issue_v(3)
    kwait = {0: None, 1: 30, 2: 18, 3: 6}
    vwait = {0: 36, 1: 24, 2: 12, 3: 0}
    for T in range(4):
        if kwait[T] is not None:
            p(f's_waitcnt vmcnt({kwait[T]})')
        stage(T)
        p(f's_waitcnt vmcnt({vwait[T]}) lgkmcnt(0)')
        p('s_barrier')
        compute(2*T); compute(2*T+1)
    p('s_lshr_b32 s41, s30, 1')
    p('s_mul_i32 s42, s41, 13312')
    p('s_lshr_b32 s41, s32, 1')
    p('s_mul_i32 s43, s41, 13312')
    p('s_lshl_b32 s41, s26, 3')
    p('v_add_u32 v12, s41, v11')
    for dt in range(13):
        t = TMP + (dt & 1) * 24
        for L in range(3):
            for r in range(4):
                p(f'v_accvgpr_read_b32 v{t+L*4+r}, a{ACC + (L*13+dt)*4 + r}')
        o = t + 12
        for L in range(3):
            p(f'v_cvt_pk_bf16_f32 v{o+L*2}, v{t+L*4}, v{t+L*4+1}')
            p(f'v_cvt_pk_bf16_f32 v{o+L*2+1}, v{t+L*4+2}, v{t+L*4+3}')
        p(f's_add_u32 s44, s42, {dt*1024}')
        p(f's_add_u32 s45, s43, {dt*1024}')
        p(f'buffer_store_dwordx4 {vr(o, 4)}, v11, s[16:19], s44 offen')
        p(f'buffer_store_dwordx2 {vr(o+4, 2)}, v12, s[16:19], s45 offen')
    p('K1_END:')
    p('s_endpgm')
    return p.finalize(), 244, 228, 148480

def gen_k2():
    p = Prog()
    p('s_cmp_ge_u32 s2, 39')
    p('s_cbranch_scc1 K2_END')
    p('s_load_dwordx2 s[4:5], s[0:1], 48')
    p('s_load_dwordx2 s[8:9], s[0:1], 48')
    p('v_lshlrev_b32 v1, 4, v0')
    p('s_lshl_b32 s20, s2, 11')
    p('v_add_u32 v1, s20, v1')
    p(f's_mul_i32 s21, s3, {8*PART_BYTES}')
    p(f's_mul_i32 s22, s3, {PART_BYTES}')
    p('s_waitcnt lgkmcnt(0)')
    p('s_add_u32 s4, s4, s21'); p('s_addc_u32 s5, s5, 0'); srd(p, 4, None, 8*PART_BYTES)
    p('s_add_u32 s8, s8, s22'); p('s_addc_u32 s9, s9, 0')
    p(f's_add_u32 s8, s8, {KVF_OFF}'); p('s_addc_u32 s9, s9, 0'); srd(p, 8, None, PART_BYTES)
    for c in range(8):
        p(f's_mov_b32 s23, {c*PART_BYTES}')
        p(f'buffer_load_dwordx4 {vr(8+c*4, 4)}, v1, s[4:7], s23 offen')
    for c in range(8):
        p(f's_waitcnt vmcnt({7-c})')
        for j in range(4):
            x = 8 + c*4 + j
            if c == 0:
                p(f'v_lshlrev_b32 v{40+2*j}, 16, v{x}')
                p(f'v_and_b32 v{41+2*j}, 0xffff0000, v{x}')
            else:
                p(f'v_lshlrev_b32 v48, 16, v{x}')
                p(f'v_and_b32 v49, 0xffff0000, v{x}')
                p(f'v_add_f32 v{40+2*j}, v{40+2*j}, v48')
                p(f'v_add_f32 v{41+2*j}, v{41+2*j}, v49')
    for j in range(4):
        p(f'v_cvt_pk_bf16_f32 v{52+j}, v{40+2*j}, v{41+2*j}')
    p('buffer_store_dwordx4 v[52:55], v1, s[8:11], 0 offen')
    p('K2_END:')
    p('s_endpgm')
    return p.finalize(), 56, 0, 0

def gen_k3():
    p = Prog()
    PROJL = 0; KVL = 73728
    QF = 16; PHQ = 112; DD = 208; QN = 240; TMP = 244
    AW = 0
    p('s_cmp_ge_u32 s2, 256')
    p('s_cbranch_scc1 K3_END')
    p('s_load_dwordx2 s[4:5], s[0:1], 0')
    p('s_load_dwordx2 s[8:9], s[0:1], 32')
    p('s_load_dwordx2 s[12:13], s[0:1], 24')
    p('s_load_dwordx2 s[16:17], s[0:1], 48')
    wg_decode(p)
    p('s_mul_i32 s23, s22, 98304')
    p(f's_mul_i32 s25, s20, {PART_BYTES}')
    p('v_lshrrev_b32 v12, 6, v0')
    p('v_and_b32 v1, 63, v0')
    p('v_readfirstlane_b32 s24, v12')
    p('v_and_b32 v13, 15, v1')
    p('v_lshrrev_b32 v14, 4, v1')
    p('v_mul_u32_u24 v2, 384, v13')
    p('v_lshl_add_u32 v2, v14, 4, v2')
    p('v_lshlrev_b32 v4, 4, v1')
    p('v_add_u32 v5, 49152, v4')
    p(f'v_add_u32 v6, {KVL}, v4')
    p(f'v_add_u32 v7, {KVL + 39936}, v4')
    p('v_mul_u32_u24 v8, 384, v13')
    p('v_and_b32 v15, 1, v14')
    p('v_lshl_add_u32 v8, v15, 5, v8')
    p('v_lshrrev_b32 v15, 1, v14')
    p('v_lshl_add_u32 v8, v15, 4, v8')
    p(f's_mov_b32 s40, {f32(C1)}')
    p('s_mul_i32 s36, s24, 24576')
    p('s_waitcnt lgkmcnt(0)')
    p('s_add_u32 s4, s4, s23'); p('s_addc_u32 s5, s5, 0'); srd(p, 4, None, 98304)
    p('s_add_u32 s8, s8, s23'); p('s_addc_u32 s9, s9, 0'); srd(p, 8, None, 98304)
    srd(p, 12, None, 73728)
    p('s_add_u32 s16, s16, s25'); p('s_addc_u32 s17, s17, 0')
    p(f's_add_u32 s16, s16, {KVF_OFF}'); p('s_addc_u32 s17, s17, 0'); srd(p, 16, None, PART_BYTES)
    p('s_mul_i32 s37, s24, 18432')
    for L in range(3):
        for ks in range(6):
            p(f's_add_u32 s41, s37, {L*6144 + ks*64}')
            p(f's_add_u32 m0, s37, {PROJL + (L*6+ks)*1024}')
            p('buffer_load_dwordx4 v2, s[12:15], s41 offen lds')
    for st in range(4):
        p(f's_add_u32 s41, s36, {st*6144}')
        for ks in range(6):
            p(f'buffer_load_dwordx4 {vr(QF + (st*6+ks)*4, 4)}, v2, s[4:7], s41 offen offset:{ks*64}')
    p('s_mul_i32 s38, s24, 20480')
    for e in range(20):
        if e == 18:
            p('s_cmp_eq_u32 s24, 3')
            p('s_cbranch_scc1 K3_KVDONE')
        p(f's_add_u32 s41, s38, {e*1024}')
        p(f's_add_u32 m0, s38, {KVL + e*1024}')
        p('buffer_load_dwordx4 v4, s[16:19], s41 offen lds')
    p('K3_KVDONE:')
    p('s_waitcnt vmcnt(18)')
    for st in range(4):
        norm_reduce(p, QF + st*24, TMP, TMP+4)
        p(f'v_mov_b32 v{QN+st}, v{TMP}')
    p('s_barrier')
    for mt in range(12):
        base = 'v4' if mt < 8 else 'v5'
        off0 = (mt if mt < 8 else mt-8) * 6144
        w = AW + (mt & 1) * 24
        for ks in range(6):
            p(f'ds_read_b128 {ar(w+ks*4, 4)}, {base} offset:{off0 + ks*1024}')
        for ks in range(6):
            p(f's_waitcnt lgkmcnt({5-ks})')
            for st in range(4):
                d = vr(DD + st*4, 4)
                c = '0' if ks == 0 else d
                p(f'v_mfma_f32_16x16x32_bf16 {d}, {ar(w+ks*4, 4)}, {vr(QF + (st*6+ks)*4, 4)}, {c}')
        t = mt >> 1; hf = mt & 1
        for st in range(4):
            for r in range(4):
                x = DD + st*4 + r
                p(f'v_fma_f32 v{x}, v{x}, s40, -v{QN+st}')
            for r in range(4):
                x = DD + st*4 + r
                p(f'v_exp_f32 v{x}, v{x}')
            x = DD + st*4
            o = PHQ + (t*4+st)*4 + hf*2
            p(f'v_cvt_pk_bf16_f32 v{o}, v{x}, v{x+1}')
            p(f'v_cvt_pk_bf16_f32 v{o+1}, v{x+2}, v{x+3}')
    p('s_waitcnt vmcnt(0)')
    p('s_barrier')
    def kvaddr(t, dt):
        if t < 3: return 'v6', (t*13+dt)*1024
        return 'v7', ((t-3)*13+dt)*1024
    for t in range(6):
        b, o = kvaddr(t, 12)
        p(f'ds_read_b128 {ar(AW+t*4, 4)}, {b} offset:{o}')
    for t in range(6):
        p(f's_waitcnt lgkmcnt({5-t})')
        for st in range(4):
            d = vr(DD + st*4, 4)
            c = '0' if t == 0 else d
            p(f'v_mfma_f32_16x16x32_bf16 {d}, {ar(AW+t*4, 4)}, {vr(PHQ + (t*4+st)*4, 4)}, {c}')
    for st in range(4):
        p(f'v_add_f32 v{QN+st}, {f32(1e-6)}, v{DD+st*4}')
    for st in range(4):
        p(f'v_rcp_f32 v{QN+st}, v{QN+st}')
    OUT = QF
    for pp in range(6):
        for h in range(2):
            dt = 2*pp + h
            w = AW + h*24
            for t in range(6):
                b, o = kvaddr(t, dt)
                p(f'ds_read_b128 {ar(w+t*4, 4)}, {b} offset:{o}')
        for h in range(2):
            w = AW + h*24
            for t in range(6):
                p(f's_waitcnt lgkmcnt({11 - h*6 - t})')
                for st in range(4):
                    d = vr(DD + (h*4+st)*4, 4)
                    c = '0' if t == 0 else d
                    p(f'v_mfma_f32_16x16x32_bf16 {d}, {ar(w+t*4, 4)}, {vr(PHQ + (t*4+st)*4, 4)}, {c}')
        for st in range(4):
            o = OUT + ((pp & 1)*4 + st)*4
            for h in range(2):
                x = DD + (h*4+st)*4
                for r in range(4):
                    p(f'v_mul_f32 v{x+r}, v{x+r}, v{QN+st}')
                p(f'v_cvt_pk_bf16_f32 v{o+h*2}, v{x}, v{x+1}')
                p(f'v_cvt_pk_bf16_f32 v{o+h*2+1}, v{x+2}, v{x+3}')
            p(f'v_permlane16_swap_b32 v{o}, v{o+2}')
            p(f'v_permlane16_swap_b32 v{o+1}, v{o+3}')
            p(f's_add_u32 s41, s36, {st*6144}')
            p(f'buffer_store_dwordx4 {vr(o, 4)}, v8, s[8:11], s41 offen offset:{pp*64}')
    p('K3_END:')
    p('s_endpgm')
    return p.finalize(), 252, 48, 153600

def kernel_text(name, body):
    return f""".globl {name}
.p2align 8
.type {name},@function
{name}:
{body}"""

def desc(name, nv, na, ygrid=False):
    acc = (nv + 3) // 4 * 4
    s = f""".amdhsa_kernel {name}
  .amdhsa_next_free_vgpr {acc + na}
  .amdhsa_next_free_sgpr 64
  .amdhsa_accum_offset {acc}
  .amdhsa_group_segment_fixed_size 0
  .amdhsa_kernarg_size 56
  .amdhsa_user_sgpr_count 2
  .amdhsa_user_sgpr_kernarg_segment_ptr 1
  .amdhsa_system_sgpr_workgroup_id_x 1
"""
    if ygrid: s += "  .amdhsa_system_sgpr_workgroup_id_y 1\n"
    s += ".end_amdhsa_kernel\n"
    return s

def main(out):
    k1, k1v, k1a, k1l = gen_k1()
    k2, k2v, k2a, k2l = gen_k2()
    k3, k3v, k3a, k3l = gen_k3()
    s = HEADER
    s += f"; @launch kernel=perf_k1_kernel grid=(256,1,1) block=(256,1,1) lds={k1l}\n"
    s += f"; @launch kernel=perf_k2_kernel grid=(39,32,1) block=(128,1,1) lds={k2l}\n"
    s += f"; @launch kernel=perf_k3_kernel grid=(256,1,1) block=(256,1,1) lds={k3l}\n"
    s += '.amdgcn_target "amdgcn-amd-amdhsa--gfx950"\n.text\n'
    s += kernel_text('perf_k1_kernel', k1)
    s += kernel_text('perf_k2_kernel', k2)
    s += kernel_text('perf_k3_kernel', k3)
    s += '.section .rodata,"a"\n.p2align 6\n'
    s += desc('perf_k1_kernel', k1v, k1a)
    s += '.p2align 6\n' + desc('perf_k2_kernel', k2v, k2a, True)
    s += '.p2align 6\n' + desc('perf_k3_kernel', k3v, k3a)
    open(out, 'w').write(s)

if __name__ == '__main__':
    main(sys.argv[1] if len(sys.argv) > 1 else 'standalone__linear_kernel_performer__prompt.s')
```
